```python
import torch

def _softmax(x, axis=-1):
    return torch.softmax(x, dim=axis)
def _gelu(x):
    return torch.nn.functional.gelu(x, approximate="tanh")
def _silu(x):
    return torch.nn.functional.silu(x)
def _sigmoid(x):
    return torch.sigmoid(x)
def _layernorm(x, axis=-1, eps=1e-5):
    m = x.mean(dim=axis, keepdim=True)
    v = x.var(dim=axis, keepdim=True, unbiased=False)
    return (x - m) / torch.sqrt(v + eps)
def _scatter_add(tgt, idx, src, axis=0):
    return tgt.clone().index_add_(axis, idx, src)
def _segment_sum(src, seg, n):
    out = torch.zeros((n,) + src.shape[1:], dtype=src.dtype)
    return out.index_add_(0, seg, src)
def _pad(x, pw):
    flat = tuple(v for pair in reversed(pw) for v in pair)
    return torch.nn.functional.pad(x, flat)

kernel_name = 'gated_mix__linear_kernel_hedgehog__dense_activation_silu__prompt'

def setup_inputs():

    _w = (lambda a: (lambda t: t.to(torch.bfloat16) if t.is_floating_point() else t)(torch.as_tensor(a)))
    def _A_setup():
        B, S, D, H = 1, 2048, 448, 16
        Dh = D // H
        return {
            "x": _w((lambda *s: torch.randn(*s, dtype=torch.bfloat16) * 0.05)(B, S, D)),
            "wqkv": _w((lambda *s: torch.randn(*s, dtype=torch.bfloat16) * 0.8)(D, 3 * D)),
            "w_phi": _w((lambda *s: torch.randn(*s, dtype=torch.bfloat16) * 0.8)(H, Dh, Dh) * (Dh ** -0.5)),
            "wo": _w((lambda *s: torch.randn(*s, dtype=torch.bfloat16) * 0.05)(D, D)),
        }
    _A_in = _A_setup()

    def _B_setup():
        B, S, D, F = 1, 2048, 448, 1792
        return {
            "x": _w((lambda *s: torch.randn(*s, dtype=torch.bfloat16) * 0.05)(B, S, D)),
            "w1": _w((lambda *s: torch.randn(*s, dtype=torch.bfloat16) * 3.2)(D, F) * (D ** -0.5)),
            "w2": _w((lambda *s: torch.randn(*s, dtype=torch.bfloat16) * 0.2)(F, D) * (F ** -0.5)),
        }
    _B_in = _B_setup()

    return {
        "A_x": _A_in["x"],
        "A_wqkv": _A_in["wqkv"],
        "A_w_phi": _A_in["w_phi"],
        "A_wo": _A_in["wo"],
        "B_x": _B_in["x"],
        "B_w1": _B_in["w1"],
        "B_w2": _B_in["w2"],
        "gate_w": _w((lambda *s: torch.randn(*s, dtype=torch.bfloat16) * 0.05)(448) * 16.0),
    }

def reference(A_x, A_wqkv, A_w_phi, A_wo, B_x, B_w1, B_w2, gate_w):
    def _A_ref(x, wqkv, w_phi, wo):
        B, S, D = x.shape
        H = 16; Dh = D // H
        qkv = (lambda x, *d: x.permute(*d))((x @ wqkv).reshape(B, S, 3, H, Dh), 2, 0, 3, 1, 4)
        q, k, v = qkv[0], qkv[1], qkv[2]
        pq = torch.einsum("bhsd,hdf->bhsf", q, w_phi)
        pk = torch.einsum("bhsd,hdf->bhsf", k, w_phi)
        phi_q = torch.concatenate([_softmax(pq, axis=-1), _softmax(-pq, axis=-1)], axis=-1)
        phi_k = torch.concatenate([_softmax(pk, axis=-1), _softmax(-pk, axis=-1)], axis=-1)
        kv = torch.einsum("bhsf,bhsd->bhfd", phi_k, v)
        z  = torch.einsum("bhsf->bhf", phi_k)
        num = torch.einsum("bhqf,bhfd->bhqd", phi_q, kv)
        den = torch.einsum("bhqf,bhf->bhq", phi_q, z)[..., None] + 1e-6
        o = num / den
        return (lambda x, *d: x.permute(*d))(o, 0, 2, 1, 3).reshape(B, S, D) @ wo

    def _B_ref(x, w1, w2):
        h = torch.einsum("bsd,df->bsf", x, w1)
        h = _silu(h)
        out = torch.einsum("bsf,fd->bsd", h, w2)
        return out

    x = A_x
    g = _sigmoid((x * gate_w).sum(-1, keepdims=True))
    a = _A_ref(x, A_wqkv, A_w_phi, A_wo)
    b = _B_ref(x, B_w1, B_w2)
    return g * a + (1 - g) * b
```

```python
import re

class Ins:
    __slots__ = ("text", "kind", "tag", "comment")
    def __init__(self, text, kind=None, tag=None):
        self.text = text; self.kind = kind; self.tag = tag
    def __repr__(self): return f"Ins({self.text!r},{self.kind},{self.tag})"

class Wait:
    def __init__(self, vm=None, ds=None):
        self.vm = vm; self.ds = ds

class Label:
    def __init__(self, name): self.name = name

class Reset:
    def __init__(self, vm=False, ds=False): self.vm = vm; self.ds = ds

def vm(text, tag=None): return Ins(text, "vm", tag)
def ds(text, tag=None): return Ins(text, "ds", tag)
def op(text): return Ins(text)

def flatten(x, out=None):
    if out is None: out = []
    if isinstance(x, (list, tuple)):
        for y in x: flatten(y, out)
    elif isinstance(x, str):
        for line in x.split("\n"):
            line = line.strip()
            if not line: continue
            if line.endswith(":"): out.append(Label(line[:-1]))
            else: out.append(Ins(line))
    elif x is None:
        pass
    else:
        out.append(x)
    return out

def resolve(seq):
    out = []
    vmq = []
    dsq = []
    for it in seq:
        if isinstance(it, Ins):
            if it.kind == "vm": vmq.append(it.tag)
            elif it.kind == "ds": dsq.append(it.tag)
            elif it.text.startswith("s_waitcnt"):
                m = re.search(r"vmcnt\((\d+)\)", it.text)
                if m and int(m.group(1)) == 0: vmq = []
                m = re.search(r"lgkmcnt\((\d+)\)", it.text)
                if m and int(m.group(1)) == 0: dsq = []
            out.append(it)
        elif isinstance(it, Wait):
            parts = []
            for (tags, q, name, mx) in ((it.vm, vmq, "vmcnt", 63), (it.ds, dsq, "lgkmcnt", 15)):
                if tags is None: continue
                if tags == "all":
                    n = 0
                else:
                    if not isinstance(tags, (list, tuple, set)): tags = [tags]
                    last = -1
                    for t in tags:
                        idxs = [i for i, x in enumerate(q) if x == t]
                        if idxs: last = max(last, idxs[-1])
                    if last < 0:
                        continue
                    n = len(q) - 1 - last
                n = min(n, mx)
                parts.append(f"{name}({n})")
                del q[:len(q) - n]
            if parts: out.append(Ins("s_waitcnt " + " ".join(parts)))
        elif isinstance(it, Reset):
            if it.vm: vmq = []
            if it.ds: dsq = []
        else:
            out.append(it)
    return out

REG = re.compile(r"\b([vas])(\d+)\b|\b([vas])\[(\d+):(\d+)\]")
def regs(opnd):
    s = set()
    for m in REG.finditer(opnd):
        if m.group(1): s.add((m.group(1), int(m.group(2))))
        else:
            for k in range(int(m.group(4)), int(m.group(5)) + 1): s.add((m.group(3), k))
    if re.search(r"\bvcc\b", opnd): s.add(("s", "vcc"))
    if re.search(r"\bm0\b", opnd): s.add(("s", "m0"))
    if re.search(r"\bexec\b", opnd): s.add(("s", "exec"))
    return s

TRANS = ("v_exp_f32", "v_log_f32", "v_rcp_f32", "v_rsq_f32", "v_sqrt_f32", "v_sin_f32", "v_cos_f32")
def parse(text):
    t = text.split(";")[0].strip()
    mn = t.split()[0]
    rest = t[len(mn):].strip()
    ops = [o.strip() for o in split_ops(rest)]
    w, r = set(), set()
    if mn.startswith("v_mfma"):
        w = regs(ops[0]); r = regs(ops[1]) | regs(ops[2]) | regs(ops[3])
        return mn, w, r, dict(A=regs(ops[1]), B=regs(ops[2]), C=regs(ops[3]), D=regs(ops[0]))
    if mn.startswith("v_cmp"):
        w = regs(ops[0]); r = set().union(*[regs(o) for o in ops[1:]])
    elif mn.startswith("v_permlane32_swap") or mn.startswith("v_permlane16_swap"):
        w = regs(ops[0]) | regs(ops[1]); r = set(w)
    elif mn.startswith("v_readfirstlane") or mn.startswith("v_readlane"):
        w = regs(ops[0]); r = set().union(*[regs(o) for o in ops[1:]])
    elif mn.startswith("v_"):
        w = regs(ops[0]); r = set().union(*[regs(o) for o in ops[1:]]) if len(ops) > 1 else set()
        if mn.startswith("v_fmac") or mn.startswith("v_dot2c") : r |= w
        if mn in ("v_cndmask_b32", "v_cndmask_b32_e32") and len(ops) == 3: r.add(("s", "vcc"))
        if "_co_" in mn: w |= regs(ops[1])
    elif mn.startswith("buffer_load") or mn.startswith("global_load"):
        if " lds" in t or "_lds_" in mn:
            r = set().union(*[regs(o) for o in ops]); r.add(("s", "m0"))
        else:
            w = regs(ops[0]); r = set().union(*[regs(o) for o in ops[1:]])
    elif mn.startswith("buffer_store") or mn.startswith("global_store") or mn.startswith("buffer_atomic") or mn.startswith("global_atomic"):
        r = set().union(*[regs(o) for o in ops])
    elif mn.startswith("ds_read"):
        w = regs(ops[0]); r = regs(ops[1])
    elif mn.startswith("ds_write"):
        r = set().union(*[regs(o) for o in ops])
    elif mn.startswith("s_"):
        if mn in ("s_cmp_eq_u32","s_cmp_lg_u32","s_cmp_lt_u32","s_cmp_ge_u32","s_cmp_gt_u32","s_cmp_le_u32","s_waitcnt","s_barrier","s_nop","s_sleep","s_endpgm","s_branch","s_setprio") or mn.startswith("s_cbranch") or mn.startswith("s_cmp"):
            r = set().union(*[regs(o) for o in ops]) if ops else set()
        else:
            w = regs(ops[0]) if ops else set(); r = set().union(*[regs(o) for o in ops[1:]]) if len(ops) > 1 else set()
    return mn, w, r, None

def split_ops(s):
    out, depth, cur = [], 0, ""
    for ch in s:
        if ch == "[": depth += 1
        if ch == "]": depth -= 1
        if ch == "," and depth == 0:
            out.append(cur); cur = ""
        else: cur += ch
    if cur.strip(): out.append(cur)
    return out

def nstates(text):
    m = re.match(r"s_nop\s+(\d+)", text)
    if m: return int(m.group(1)) + 1
    return 1

def check_hazards(seq, window=24):
    ins = [x for x in seq if isinstance(x, Ins)]
    P = [parse(x.text) for x in ins]
    errs = []
    for i, (mn, w, r, mf) in enumerate(P):
        dist = 0
        for j in range(i - 1, max(-1, i - 40), -1):
            pmn, pw, pr, pmf = P[j]
            isvalu_p = pmn.startswith("v_") and not pmn.startswith("v_mfma")
            isvalu = mn.startswith("v_") and not mn.startswith("v_mfma")
            ismem = mn.startswith(("buffer_", "global_", "ds_"))
            def need(n, why):
                if dist < n: errs.append(f"hazard {why}: need {n} have {dist}: [{ins[j].text}] -> [{ins[i].text}]")
            vw = {x for x in pw if x[0] in "va"}
            sw = {x for x in pw if x[0] == "s"}
            if pmf is not None:
                D = pmf["D"]
                if mf is not None:
                    if (mf["A"] | mf["B"]) & D: need(12, "mfma D->AB")
                    if mf["C"] & D and mf["C"] != D: need(10, "mfma D->C partial")
                elif isvalu or ismem:
                    if (r | w) & D: need(12, "mfma D->valu/mem")
                if isvalu and (w & pmf["C"]) and not (w & D): need(7, "mfma C WAR")
            if isvalu_p:
                if mf is not None and (vw & r): need(2, "valu->mfma")
                if mn.startswith("v_permlane") and (vw & r): need(2, "valu->permlane")
                if mn.startswith(("v_readfirstlane", "v_readlane")) and (vw & r): need(1, "valu->readlane")
                if pmn in TRANS and isvalu and mn not in TRANS and (vw & r): need(1, "trans->valu")
                if sw and isvalu and (sw & r): need(2, "valu sgpr->valu")
                if sw and mn.startswith(("buffer_", "global_")) and (sw & r): need(5, "valu sgpr->vmem")
                if "dpp" in ins[i].text and (vw & r): need(2, "valu->dpp")
            if pmn.startswith("s_") and ("s", "m0") in pw and ("s", "m0") in r and mn.startswith(("buffer_", "global_")): need(1, "m0->dma")
            if pmn.startswith(("buffer_store_dwordx4", "buffer_store_dwordx3", "global_store_dwordx4")) and isvalu:
                data = regs(split_ops(ins[j].text[len(pmn):])[0 if pmn.startswith("buffer") else 1])
                if w & data: need(2, "store data WAR")
            dist += nstates(ins[j].text)
            if dist >= window: break
    return errs

def emit(seq):
    lines = []
    for it in seq:
        if isinstance(it, Label): lines.append(it.name + ":")
        else: lines.append("    " + it.text)
    return "\n".join(lines)
```

```python
import sys
from asmlib import *

KNAME = "gated_mix__linear_kernel_hedgehog__dense_activation_silu__prompt_kernel"
STAMPS = "--stamps" in sys.argv
OUT = [a for a in sys.argv[1:] if not a.startswith("--")]
OUT = OUT[0] if OUT else "gated_mix__linear_kernel_hedgehog__dense_activation_silu__prompt.s"

FLAG_OFF = 0x0
WP_OFF   = 0x10000
KV_OFF   = 0x200000
H_OFF    = 0x400000
WS_USED  = H_OFF + 64*144*1024
STAMP_OFF= 0x1000000
XB = 0; XW = 28672
W0 = 114688
PHIT = W0 + 28672; PHI_P = 136; PHI_W = 32*PHI_P
WPHI = W0 + 46080
GSH  = W0 + 48128
KVS  = W0
LDS_BYTES = 163840
SX, SW1A, SW1B, SWQ, SWS, SWSB, SWSR, SW2, SWO, SOUT, SPHI, SG = [28+4*i for i in range(12)]
sR, sC, sW, sN, sU2, sRT0 = 76, 77, 78, 79, 80, 81
sXw, sW1w, sW0w, sWPc, sQw, sHst, sHA, sHB = 82, 83, 84, 85, 86, 87, 88, 89
sT, sT2, sT3, sL = 90, 91, 92, 93
sKVc, sCNT = 94, 95
smH, smD28, smT = 96, 98, 100
def srd(n): return f"s[{n}:{n+3}]"
def sp(n): return f"s[{n}:{n+1}]"
def vr(a, n): return f"v[{a}:{a+n-1}]"
def ar(a, n): return f"a[{a}:{a+n-1}]"
OOB = 0x80000000
vL, vL16, vX0, vX1, vW1, vW2 = 0, 1, 2, 3, 4, 5
vXR = [6, 7, 8, 9]
vTA = [10, 11]; vTB = [12, 13]; vTBh = [14, 15]
vHK, vHKh, vHQ = 16, 17, 18
vP2 = [19, 20]
vPHW, vPHR, vWPH = 21, 22, 23
vFL, vFLW = 24, 25
vG = 26
vT0, vT1, vT2, vT3 = 27, 28, 29, 30
ACC = [32, 48, 64, 80]
AF = [96, 128]
TMP = 160

nstamp = [0]
def stamp(name):
    if not STAMPS: return []
    k = nstamp[0]; nstamp[0] += 1
    assert k < 15
    print(f"stamp {k}: {name}", file=sys.stderr)
    return [op("s_memrealtime s[26:27]"), op("s_waitcnt vmcnt(63) lgkmcnt(0)"), op(f"s_mov_b32 s{4+k}, s26")]

def dma(voff, S, soff_reg, soff_const, m0_reg, m0_const, tag, flags=""):
    r = []
    r.append(op(f"s_add_u32 m0, s{m0_reg}, {m0_const}") if m0_reg is not None else op(f"s_mov_b32 m0, {m0_const}"))
    r.append(op(f"s_add_u32 s{sT}, s{soff_reg}, {soff_const}") if soff_reg is not None else op(f"s_mov_b32 s{sT}, {soff_const}"))
    r.append(vm(f"buffer_load_dwordx4 v{voff}, {srd(S)}, s{sT} offen {flags}lds", tag))
    return r

def mk_srd(S, lo, hi, size, add_reg=None, add_const=0):
    r = []
    if add_reg is not None:
        r += [op(f"s_add_u32 s{S}, s{lo}, s{add_reg}"), op(f"s_addc_u32 s{S+1}, s{hi}, 0")]
    elif add_const:
        r += [op(f"s_add_u32 s{S}, s{lo}, {add_const}"), op(f"s_addc_u32 s{S+1}, s{hi}, 0")]
    else:
        r += [op(f"s_mov_b32 s{S}, s{lo}"), op(f"s_mov_b32 s{S+1}, s{hi}")]
    if isinstance(size, int): r.append(op(f"s_mov_b32 s{S+2}, {size}"))
    else: r += size
    r.append(op(f"s_mov_b32 s{S+3}, 0x20000"))
    return r

lbl = [0]
def newlabel(p):
    lbl[0] += 1
    return f"{p}_{lbl[0]}"

def poll_flags(off_reg_expr):
    L = newlabel("POLL"); D = newlabel("POLLD")
    return [off_reg_expr,
        op(f"s_mov_b32 s{sCNT}, 0x40000"),
        Label(L),
        op(f"buffer_load_dword v{vT0}, v{vFL}, {srd(SWS)}, s{sT2} offen sc1"),
        op("s_waitcnt vmcnt(0)"),
        op(f"v_cmp_ne_u32 vcc, s{sN}, v{vT0}"),
        op(f"s_cbranch_vccz {D}"),
        op(f"s_sub_u32 s{sCNT}, s{sCNT}, 1"),
        op(f"s_cmp_eq_u32 s{sCNT}, 0"),
        op(f"s_cbranch_scc1 {D}"),
        op("s_sleep 2"),
        op(f"s_branch {L}"),
        Label(D), Reset(vm=True)]

def write_flag(base, idx_reg, grp_reg):
    return [op(f"s_lshl_b32 s{sT2}, s{grp_reg}, 7"),
        op(f"s_lshl_b32 s{sT3}, s{idx_reg}, 2"),
        op(f"s_add_u32 s{sT2}, s{sT2}, s{sT3}"),
        op(f"s_add_u32 s{sT2}, s{sT2}, {FLAG_OFF + base}"),
        op(f"v_mov_b32 v{vT0}, s{sN}"),
        op("s_mov_b64 exec, 1"),
        vm(f"buffer_store_dword v{vT0}, v{vFLW}, {srd(SWS)}, s{sT2} offen sc1", "flagst"),
        op("s_mov_b64 exec, -1")]

def flag_off(base, grp_reg):
    return [op(f"s_lshl_b32 s{sT2}, s{grp_reg}, 7"), op(f"s_add_u32 s{sT2}, s{sT2}, {FLAG_OFF + base}")]
FL_R, FL_H, FL_KV, FL_O = 0, 2048, 4096, 6144

def prologue():
    p = []
    p += [op("s_cmp_ge_u32 s2, 256"), op("s_cbranch_scc1 END")]
    if STAMPS: p += [op("s_memrealtime s[26:27]"), op("s_waitcnt lgkmcnt(0)"), op("s_mov_b32 s3, s26")]
    p += [
          op("s_load_dwordx16 s[4:19], s[0:1], 0"), op("s_load_dwordx4 s[20:23], s[0:1], 64"),
          op("s_load_dwordx2 s[24:25], s[0:1], 80")]
    p += [op(f"v_lshrrev_b32 v{vT0}, 6, v0"), op("v_and_b32 v0, 63, v0"),
          op(f"s_and_b32 s{sT}, s2, 7"), op(f"s_lshr_b32 s{sT2}, s2, 3"),
          op(f"v_readfirstlane_b32 s{sW}, v{vT0}"),
          op(f"s_lshr_b32 s{sR}, s{sT}, 1"), op(f"s_lshl_b32 s{sR}, s{sR}, 2"),
          op(f"s_lshr_b32 s{sT3}, s{sT2}, 3"), op(f"s_add_u32 s{sR}, s{sR}, s{sT3}"),
          op(f"s_and_b32 s{sC}, s{sT}, 1"), op(f"s_lshl_b32 s{sC}, s{sC}, 3"),
          op(f"s_and_b32 s{sU2}, s{sT2}, 7"), op(f"s_add_u32 s{sC}, s{sC}, s{sU2}"),
          ]
    p += [op("s_getpc_b64 s[26:27]"), Label("PCREF"),
          op(f"s_lshl_b32 s{sT3}, s{sT2}, 10"),
          op(f"v_lshlrev_b32 v{vT1}, 7, v0"), op(f"v_add_u32 v{vT1}, s{sT3}, v{vT1}"),
          op(f"v_min_u32 v{vT1}, END-PCREF, v{vT1}"),
          op("s_mov_b64 exec, 0xff"),
          vm(f"global_load_dword v31, v{vT1}, s[26:27]", "codepf"),
          op("s_mov_b64 exec, -1")]
    l = "v0"
    p += [op(f"v_lshlrev_b32 v{vL16}, 4, {l}")]
    p += [op(f"v_lshrrev_b32 v{vT0}, 3, {l}"), op(f"v_and_b32 v{vT1}, 7, {l}"), op(f"v_lshrrev_b32 v{vT2}, 4, {l}"),
          op(f"v_xor_b32 v{vT3}, v{vT1}, v{vT2}"),
          op(f"v_mul_u32_u24 v{vX0}, 896, v{vT0}"),
          op(f"v_lshl_add_u32 v{vX0}, v{vT3}, 4, v{vX0}"),
          op(f"v_xor_b32 v{vX1}, 64, v{vX0}"),
          ]
    p.pop()
    p += [op(f"v_xor_b32 v{vT3}, 4, v{vT3}"), op(f"v_mul_u32_u24 v{vX1}, 896, v{vT0}"),
          op(f"v_lshl_add_u32 v{vX1}, v{vT3}, 4, v{vX1}")]
    p += [op(f"v_and_b32 v{vT2}, 1, v{vT2}"), op(f"v_lshlrev_b32 v{vT2}, 2, v{vT2}"), op(f"v_xor_b32 v{vT3}, v{vT1}, v{vT2}"),
          op(f"v_mul_u32_u24 v{vW1}, 3584, v{vT0}"), op(f"v_lshl_add_u32 v{vW1}, v{vT3}, 4, v{vW1}"),
          op(f"v_mul_u32_u24 v{vW2}, 896, v{vT0}"), op(f"v_lshl_add_u32 v{vW2}, v{vT3}, 4, v{vW2}")]
    p += [op("s_waitcnt lgkmcnt(0)")]
    p += [op(f"s_mul_i32 s{sXw}, s{sW}, {XW}"),
          op(f"s_mul_i32 s{sW1w}, s{sW}, {16*3584}"),
          op(f"s_lshl_b32 s{sW0w}, s{sW}, 11"), op(f"s_add_u32 s{sW0w}, s{sW0w}, {W0}")]
    p += [op(f"s_mul_i32 s{sT}, s{sR}, {128*896}")] + mk_srd(SX, 4, 5, 128*896, add_reg=sT)
    p += [op(f"s_lshl_b32 s{sT}, s{sC}, 1"), op(f"s_add_u32 s{sT2}, s{sC}, 12"), op(f"s_cmp_lt_u32 s{sC}, 12"),
          op(f"s_cselect_b32 s{sHA}, s{sT}, s{sT2}"),
          op(f"s_cselect_b32 s{sT3}, {448*3584 - 0}, 0"),
          op(f"s_add_u32 s{sHB}, s{sT}, 1"),
          op(f"s_lshl_b32 s{sT}, s{sHA}, 7")]
    p += mk_srd(SW1A, 14, 15, [op(f"s_sub_u32 s{SW1A+2}, {448*3584}, s{sT}")], add_reg=sT)
    p += [op(f"s_lshl_b32 s{sT}, s{sHB}, 7")]
    p += mk_srd(SW1B, 14, 15, [op(f"s_sub_u32 s{SW1B+2}, {448*3584}, s{sT}"), op(f"s_cmp_lt_u32 s{sC}, 12"),
                               op(f"s_cselect_b32 s{SW1B+2}, s{SW1B+2}, 0")], add_reg=sT)
    return p

def issue_x(j):
    return [dma(vX0 if i2 % 2 == 0 else vX1, SX, sXw, 8*i2*896 + 128*j, sXw, j*4096 + i2*1024, f"x{j}") for i2 in range(4)]
def issue_fa(j):
    slot = j % 6
    return [dma(vW1, SW1A, sW1w, (64*j + 8*e)*3584, sW0w, slot*8192 + e*1024, f"fa{j}") for e in range(2)]
def issue_fb(j):
    return [dma(vW1, SW1B, sW1w, (64*j + 8*e)*3584, sXw, j*4096 + e*1024, f"fb{j}") for e in range(2)]

def prologue2():
    p = []
    p += mk_srd(SWQ, 6, 7, 448*2688)
    p += mk_srd(SWS, 24, 25, WS_USED)
    p += mk_srd(SWSB, 24, 25, [op(f"s_cmp_lt_u32 s{sC}, 12"), op(f"s_cselect_b32 s{SWSB+2}, {WS_USED}, 0")])
    p += mk_srd(SWSR, 24, 25, [op(f"s_cmp_lt_u32 s{sU2}, 7"), op(f"s_cselect_b32 s{SWSR+2}, {WS_USED}, 0")])
    p += [op(f"s_lshl_b32 s{sT}, s{sU2}, 7")]
    p += mk_srd(SW2, 16, 17, [op(f"s_sub_u32 s{SW2+2}, {1792*896}, s{sT}"), op(f"s_cmp_lt_u32 s{sU2}, 7"),
                              op(f"s_cselect_b32 s{SW2+2}, s{SW2+2}, 0")], add_reg=sT)
    p += mk_srd(SWO, 10, 11, [op(f"s_sub_u32 s{SWO+2}, {448*896}, s{sT}"), op(f"s_cmp_lt_u32 s{sU2}, 7"),
                              op(f"s_cselect_b32 s{SWO+2}, s{SWO+2}, 0")], add_reg=sT)
    p += mk_srd(SOUT, 20, 21, [op(f"s_cmp_lt_u32 s{sU2}, 7"), op(f"s_cselect_b32 s{SOUT+2}, {2048*896}, 0")])
    p += [op(f"s_mul_i32 s{sT}, s{sC}, 1568")] + mk_srd(SPHI, 8, 9, 1568, add_reg=sT)
    p += mk_srd(SG, 18, 19, 896)
    return p

def r_loads():
    p = []
    T = TMP
    p += [op(f"s_cmp_eq_u32 s{sW}, 3"), op(f"s_cselect_b32 s{sT3}, {OOB}, 0")]
    for e in range(2):
        vo = T + 10 + e; vd = T + 12 + e; vg = T + 14 + e
        p += [op(f"v_add_u32 v{vT0}, {64*e}, v0"), op(f"v_lshrrev_b32 v{vT1}, 2, v{vT0}"), op(f"v_and_b32 v{vT2}, 3, v0"),
              op(f"v_mul_u32_u24 v{vo}, 2688, v{vT1}"), op(f"v_lshl_add_u32 v{vo}, v{vT2}, 4, v{vo}"),
              op(f"v_lshlrev_b32 v{vd}, 4, v{vT0}"),
              op(f"v_lshlrev_b32 v{vg}, 1, v{vT1}")]
        if e == 1:
            p += [op(f"v_cmp_le_u32 vcc, 48, v0"), op(f"v_mov_b32 v{vT3}, {OOB}"), op("s_nop 0"),
                  op(f"v_cndmask_b32 v{vo}, v{vo}, v{vT3}, vcc"), op(f"v_cndmask_b32 v{vd}, v{vd}, v{vT3}, vcc"),
                  op(f"v_cndmask_b32 v{vg}, v{vg}, v{vT3}, vcc")]
        p += [op(f"v_or_b32 v{vo}, s{sT3}, v{vo}"), op(f"v_or_b32 v{vd}, s{sT3}, v{vd}")]
    p += [op(f"s_mul_i32 s{sT}, s{sR}, {28*2688}"), op(f"s_mul_i32 s{sT2}, s{sW}, 896"), op(f"s_add_u32 s{sT}, s{sT}, s{sT2}"),
          op(f"s_mul_i32 s{sT2}, s{sC}, 56"), op(f"s_add_u32 s{sT}, s{sT}, s{sT2}"),
          op(f"s_mul_i32 s{sT2}, s{sR}, 56")]
    for e in range(2):
        p += [vm(f"buffer_load_dwordx4 {vr(T+4*e,4)}, v{T+10+e}, {srd(SWQ)}, s{sT} offen", "rld"),
              vm(f"buffer_load_ushort v{T+8+e}, v{T+14+e}, {srd(SG)}, s{sT2} offen", "rld")]
    return p

def r_stores():
    p = []
    T = TMP
    p += [Wait(vm="rld"),
          op(f"v_and_b32 v{vT2}, 3, v0"), op(f"v_cmp_eq_u32 vcc, 3, v{vT2}"),
          op(f"s_cmp_eq_u32 s{sW}, 0"), op(f"s_cselect_b32 s{sT3}, 0xffff, 0")]
    for e in range(2):
        p += [op(f"v_and_b32 v{T+8+e}, s{sT3}, v{T+8+e}"),
              op(f"v_cndmask_b32 v{T+4*e+2}, v{T+4*e+2}, v{T+8+e}, vcc"),
              op(f"v_cndmask_b32 v{T+4*e+3}, v{T+4*e+3}, 0, vcc") if False else op(f"v_mov_b32 v{vT3}, 0"),
              op(f"v_cndmask_b32 v{T+4*e+3}, v{T+4*e+3}, v{vT3}, vcc")]
    p += [op(f"s_lshl_b32 s{sT}, s{sW}, 4"), op(f"s_add_u32 s{sT}, s{sT}, s{sC}"), op(f"s_mul_i32 s{sT}, s{sT}, {448*64}"),
          op(f"s_mul_i32 s{sT2}, s{sR}, {28*64}"), op(f"s_add_u32 s{sT}, s{sT}, s{sT2}"), op(f"s_add_u32 s{sT}, s{sT}, {WP_OFF}")]
    for e in range(2):
        p += [vm(f"buffer_store_dwordx4 {vr(T+4*e,4)}, v{T+12+e}, {srd(SWS)}, s{sT} offen sc1", "rst")]
    return p

def lane_consts():
    p = []
    l = "v0"
    n, h = vT0, vT1
    p += [op(f"v_and_b32 v{n}, 31, {l}"), op(f"v_lshrrev_b32 v{h}, 5, {l}")]
    p += [op(f"v_lshrrev_b32 v{vT2}, 1, v{n}"), op(f"v_and_b32 v{vT2}, 7, v{vT2}"), op(f"v_xor_b32 v{vT2}, v{vT2}, v{h}"),
          op(f"v_lshlrev_b32 v{vT2}, 4, v{vT2}"), op(f"v_lshl_add_u32 v{vT2}, v{n}, 7, v{vT2}")]
    for s in range(4):
        p += [op(f"v_xor_b32 v{vXR[s]}, {32*s}, v{vT2}"), op(f"v_add_u32 v{vXR[s]}, s{sXw}, v{vXR[s]}")]
    ch, rr, cc = TMP+20, TMP+21, TMP+22
    p += [op(f"v_bfe_u32 v{ch}, {l}, 4, 1"), op(f"v_bfe_u32 v{rr}, {l}, 2, 2"), op(f"v_and_b32 v{cc}, 3, {l}")]
    cp = TMP+23; t = TMP+24
    p += [op(f"v_lshrrev_b32 v{cp}, 1, v{cc}"), op(f"v_lshl_add_u32 v{cp}, v{ch}, 1, v{cp}"),
          op(f"v_lshrrev_b32 v{t}, 1, v{rr}"), op(f"v_lshlrev_b32 v{t}, 2, v{t}"), op(f"v_xor_b32 v{cp}, v{cp}, v{t}"),
          op(f"v_lshlrev_b32 v{cp}, 4, v{cp}"), op(f"v_and_b32 v{t}, 1, v{cc}"), op(f"v_lshl_add_u32 v{cp}, v{t}, 3, v{cp}")]
    p += [op(f"v_lshl_add_u32 v{t}, v{h}, 3, v{rr}"), op(f"v_lshl_add_u32 v{t}, v{t}, 7, v{cp}"),
          op(f"v_add_u32 v{vTA[0]}, {W0}, v{t}"), op(f"v_xor_b32 v{vTB[1]}, 64, v{t}"), op(f"v_add_u32 v{vTA[1]}, {W0}, v{vTB[1]}"),
          op(f"v_mov_b32 v{vTB[0]}, v{t}"),
          op(f"v_add_u32 v{vTBh[0]}, {2*XW}, v{vTB[0]}"), op(f"v_add_u32 v{vTBh[1]}, {2*XW}, v{vTB[1]}")]
    p += [op(f"v_lshl_add_u32 v{t}, v{h}, 2, v{rr}"), op(f"v_lshl_add_u32 v{t}, v{t}, 7, v{cp}"),
          op(f"v_add_u32 v{vP2[0]}, s{sXw}, v{t}"), op(f"v_xor_b32 v{t}, 64, v{t}"), op(f"v_add_u32 v{vP2[1]}, s{sXw}, v{t}")]
    c2 = TMP+25
    p += [op(f"v_lshlrev_b32 v{c2}, 3, v{cc}"), op(f"v_lshl_add_u32 v{c2}, v{ch}, 5, v{c2}"),
          op(f"v_lshl_add_u32 v{t}, v{h}, 3, v{rr}"), op(f"v_lshl_add_u32 v{t}, v{t}, 6, v{c2}"),
          op(f"v_add_u32 v{vHK}, 2048, v{t}"), op(f"v_add_u32 v{vHKh}, {2048 + 2*XW}, v{t}"), op(f"v_add_u32 v{vHQ}, {W0}, v{t}")]
    p += [op(f"s_mul_i32 s{sT}, s{sW}, {PHI_W}"), op(f"s_add_u32 s{sT}, s{sT}, {PHIT}"),
          op(f"v_mul_u32_u24 v{vPHW}, {PHI_P}, v{n}"), op(f"v_lshl_add_u32 v{vPHW}, v{h}, 3, v{vPHW}"), op(f"v_add_u32 v{vPHW}, s{sT}, v{vPHW}"),
          op(f"v_lshl_add_u32 v{t}, v{h}, 2, v{rr}"),
          op(f"v_mul_u32_u24 v{vPHR}, {PHI_P}, v{t}"), op(f"v_add_u32 v{vPHR}, v{vPHR}, v{c2}"), op(f"v_add_u32 v{vPHR}, s{sT}, v{vPHR}"),
          op(f"v_mul_u32_u24 v{vWPH}, 56, v{t}"), op(f"v_add_u32 v{vWPH}, v{vWPH}, v{c2}"), op(f"v_add_u32 v{vWPH}, {WPHI}, v{vWPH}")]
    p += [op(f"v_cmp_le_u32 {sp(smH)}, 32, {l}"), op(f"v_cmp_eq_u32 {sp(smD28)}, 28, v{n}")]
    p += [op(f"v_and_b32 v{vFL}, 15, {l}"), op(f"v_lshlrev_b32 v{vFL}, 2, v{vFL}"),
          op(f"s_cmp_eq_u32 s{sW}, 0"), op(f"s_cselect_b32 s{sT}, 0, {OOB}"), op(f"v_mov_b32 v{vFLW}, s{sT}")]
    p += [op(f"s_mul_i32 s{sWPc}, s{sC}, 28672"), op(f"s_lshl_b32 s{sT}, s{sW}, 10"), op(f"s_add_u32 s{sWPc}, s{sWPc}, s{sT}"),
          op(f"s_add_u32 s{sWPc}, s{sWPc}, {WP_OFF}"),
          op(f"s_add_u32 s{sQw}, s{sT}, {W0}"),
          op(f"s_lshl_b32 s{sT}, s{sR}, 2"), op(f"s_add_u32 s{sT}, s{sT}, s{sW}"), op(f"s_mul_i32 s{sHst}, s{sT}, {144*1024}"),
          op(f"s_add_u32 s{sHst}, s{sHst}, {H_OFF}"),
          op(f"s_lshl_b32 s{sHA}, s{sHA}, 12"), op(f"s_add_u32 s{sHA}, s{sHA}, s{sHst}"),
          op(f"s_lshl_b32 s{sHB}, s{sHB}, 12"), op(f"s_add_u32 s{sHB}, s{sHB}, s{sHst}"),
          op(f"s_lshl_b32 s{sKVc}, s{sC}, 16"), op(f"s_lshl_b32 s{sT}, s{sW}, 10"), op(f"s_add_u32 s{sKVc}, s{sKVc}, s{sT}"),
          op(f"s_add_u32 s{sKVc}, s{sKVc}, {KV_OFF}"),
          op(f"s_lshr_b32 s{sRT0}, s{sC}, 3"), op(f"s_lshl_b32 s{sRT0}, s{sRT0}, 1"), op(f"s_lshl_b32 s{sT}, s{sR}, 2"),
          op(f"s_add_u32 s{sRT0}, s{sRT0}, s{sT}"),
          op(f"s_mov_b32 s{sL}, 0x3fb8aa3b")]
    return p

def nonce_write():
    L = newlabel("NW")
    return [op(f"s_or_b32 s{sT}, s2, s{sW}"), op(f"s_cmp_lg_u32 s{sT}, 0"), op(f"s_cbranch_scc1 {L}"),
            op("s_memrealtime s[26:27]"), op("s_waitcnt lgkmcnt(0)"),
            op("s_or_b32 s26, s26, 0x80000000"),
            op(f"v_mov_b32 v{vT0}, s26"), op(f"v_mov_b32 v{vT1}, 0"),
            op("s_mov_b64 exec, 1"),
            op(f"global_store_dword v{vT1}, v{vT0}, s[22:23] sc1"),
            op("s_mov_b64 exec, -1"),
            Label(L)]

def nonce_read():
    L = newlabel("NR"); D = newlabel("NRD")
    return [op(f"s_mov_b32 s{sCNT}, 0x40000"), op(f"v_mov_b32 v{vT1}, 0"),
            Label(L),
            op(f"global_load_dword v{vT0}, v{vT1}, s[22:23] sc1"),
            op("s_waitcnt vmcnt(0)"),
            op(f"v_readfirstlane_b32 s{sN}, v{vT0}"),
            op(f"s_cmp_lg_u32 s{sN}, 0"), op(f"s_cbranch_scc1 {D}"),
            op(f"s_sub_u32 s{sCNT}, s{sCNT}, 1"), op(f"s_cmp_eq_u32 s{sCNT}, 0"), op(f"s_cbranch_scc1 {D}"),
            op("s_sleep 2"), op(f"s_branch {L}"),
            Label(D), Reset(vm=True)]

def tr_unit(buf, s, addr_fn, tag):
    r = []
    for t in range(2):
        for e in range(2):
            v, off = addr_fn(s, t, e)
            r.append(ds(f"ds_read_b64_tr_b16 {vr(buf+4*t+2*e,2)}, v{v} offset:{off}", tag))
    return r
def fa_addr(s, t, e): return vTA[t], ((s >> 2) % 6)*8192 + (s & 3)*2048 + e*512
def fb_addr(s, t, e):
    wq, j = s & 3, s >> 2
    if wq < 2: return vTB[t], wq*XW + j*4096 + e*512
    return vTBh[t], (wq-2)*XW + j*4096 + e*512
def xfrag(s): return ar(4*s, 4)

def fa_phase():
    p = []
    def reads(j):
        r = [ds(f"ds_read_b128 {ar(16*j+4*s,4)}, v{vXR[s]} offset:{j*4096}", f"xr{j}") for s in range(4)]
        buf = AF[j % 2]
        for s in range(4): r += tr_unit(buf + 8*s, 4*j+s, fa_addr, f"far{j}")
        return r
    def mfmas(j):
        r = []
        buf = AF[j % 2]
        for s in range(4):
            for t in range(2):
                c = "0" if (j == 0 and s == 0) else vr(ACC[t], 16)
                r.append(op(f"v_mfma_f32_32x32x16_bf16 {vr(ACC[t],16)}, {vr(buf+8*s+4*t,4)}, {xfrag(4*j+s)}, {c}"))
        return r
    p += [Wait(vm=["x0", "fa0"]), op("s_barrier"), reads(0)]
    p += r_stores()
    for j in range(7):
        if j + 1 < 7:
            p += [Wait(vm=[f"x{j+1}", f"fa{j+1}"]), op("s_barrier"), reads(j+1)]
        p += [Wait(ds=[f"xr{j}", f"far{j}"])]
        p += issue_fb(j)
        if j == 1: p += issue_fa(6)
        p += mfmas(j)
    return p

def silu_tile(acc, T):
    r = []
    for k in range(16): r.append(op(f"v_mul_f32 v{T+k}, 0xbfb8aa3b, v{acc+k}"))
    for k in range(16): r.append(op(f"v_exp_f32 v{T+k}, v{T+k}"))
    for k in range(16): r.append(op(f"v_add_f32 v{T+k}, 1.0, v{T+k}"))
    for k in range(16): r.append(op(f"v_rcp_f32 v{T+k}, v{T+k}"))
    for k in range(16): r.append(op(f"v_mul_f32 v{T+k}, v{acc+k}, v{T+k}"))
    for k in range(8): r.append(op(f"v_cvt_pk_bf16_f32 v{T+16+k}, v{T+2*k}, v{T+2*k+1}"))
    return r
def h_store(T, S, sbase, t, tag):
    return [vm(f"buffer_store_dwordx4 {vr(T+16+4*s2,4)}, v{vL16}, {srd(S)}, s{sbase} offen offset:{(2*t+s2)*1024} sc1", tag) for s2 in range(2)]

def gemm_steps(nsteps, reads_fn, mfma_fn, depth, nbuf_regs, bufs):
    p = []
    for s in range(min(depth, nsteps)): p += reads_fn(s, bufs[s % len(bufs)])
    for s in range(nsteps):
        p += [Wait(ds=f"g{s}")]
        p += mfma_fn(s, bufs[s % len(bufs)])
        if s + depth < nsteps: p += reads_fn(s + depth, bufs[(s + depth) % len(bufs)])
    return p

def fb_phase():
    bufs = [AF[0] + 8*i for i in range(8)]
    def rd(s, b): return tr_unit(b, s, fb_addr, f"g{s}")
    def mf(s, b):
        return [op(f"v_mfma_f32_32x32x16_bf16 {vr(ACC[2+t],16)}, {vr(b+4*t,4)}, {xfrag(s)}, {'0' if s == 0 else vr(ACC[2+t],16)}") for t in range(2)]
    return gemm_steps(28, rd, mf, 3, 8, bufs)

def head_tile(kind, acc):
    bufs = [AF[0] + 4*i for i in range(8)]
    def addr(s, e):
        if kind == 'q': return vHQ, s*1024 + e*256
        wq, j = s & 3, s >> 2
        extra = 0 if kind == 'k' else 1024
        if wq < 2: return vHK, wq*XW + j*4096 + extra + e*256
        return vHKh, (wq-2)*XW + j*4096 + extra + e*256
    def rd(s, b):
        r = []
        for e in range(2):
            v, off = addr(s, e)
            r.append(ds(f"ds_read_b64_tr_b16 {vr(b+2*e,2)}, v{v} offset:{off}", f"g{s}"))
        return r
    def mf(s, b):
        c = '0' if s == 0 else vr(acc, 16)
        if kind == 'v': return [op(f"v_mfma_f32_32x32x16_bf16 {vr(acc,16)}, {xfrag(s)}, {vr(b,4)}, {c}")]
        return [op(f"v_mfma_f32_32x32x16_bf16 {vr(acc,16)}, {vr(b,4)}, {xfrag(s)}, {c}")]
    return gemm_steps(28, rd, mf, 4, 4, bufs)

def pack8(src, dst):
    return [op(f"v_cvt_pk_bf16_f32 v{dst+k}, v{src+2*k}, v{src+2*k+1}") for k in range(8)]

def xhalf(vreg, tmp, instr):
    return [op(f"v_mov_b32 v{tmp}, v{vreg}"), op("s_nop 1"), op(f"v_permlane32_swap_b32 v{vreg}, v{tmp}"), op("s_nop 0"),
            op(f"{instr} v{vreg}, v{vreg}, v{tmp}")]

def feature_map(z, wf, T):
    r = []
    kp = T + 16
    zz = ACC[3]
    r += pack8(z, kp)
    r += [op("s_nop 1")]
    r += [op(f"v_mfma_f32_32x32x16_bf16 {vr(zz,16)}, {vr(wf,4)}, {vr(kp,4)}, 0"),
          op(f"v_mfma_f32_32x32x16_bf16 {vr(zz,16)}, {vr(wf+4,4)}, {vr(kp+4,4)}, {vr(zz,16)}"),
          op("s_nop 15")]
    y = T + 24
    mx, mn, t1, t2 = T+28, T+29, T+30, T+31
    E = T + 32
    for k in range(4): r.append(op(f"v_cndmask_b32 v{y+k}, v{zz+12+k}, v{zz}, {sp(smH)}"))
    vals = [zz+k for k in range(12)] + [y+k for k in range(4)]
    for (dst, ins3, ins2) in ((mx, "v_max3_f32", "v_max_f32"), (mn, "v_min3_f32", "v_min_f32")):
        r.append(op(f"{ins3} v{dst}, v{vals[0]}, v{vals[1]}, v{vals[2]}"))
        for k in range(3, 15, 2): r.append(op(f"{ins3} v{dst}, v{dst}, v{vals[k]}, v{vals[k+1]}"))
        r.append(op(f"{ins2} v{dst}, v{dst}, v{vals[15]}"))
    r += xhalf(mx, t1, "v_max_f32") + xhalf(mn, t1, "v_min_f32")
    bp, bm, bp2, bm2 = y, y+1, y+2, y+3
    r += [op(f"v_mul_f32 v{bp}, s{sL}, v{mx}"), op(f"v_mul_f32 v{bm}, s{sL}, v{mn}"),
          op(f"v_sub_f32 v{bp}, 0, v{bp}"),
          op(f"v_mov_b32 v{t1}, 0xff800000"),
          op(f"v_cndmask_b32 v{bp2}, v{bp}, v{t1}, {sp(smH)}"), op(f"v_cndmask_b32 v{bm2}, v{bm}, v{t1}, {sp(smH)}")]
    for k in range(16):
        r.append(op(f"v_fma_f32 v{E+k}, v{zz+k}, s{sL}, v{bp if k < 12 else bp2}"))
        r.append(op(f"v_fma_f32 v{E+16+k}, -v{zz+k}, s{sL}, v{bm if k < 12 else bm2}"))
    for k in range(32): r.append(op(f"v_exp_f32 v{E+k}, v{E+k}"))
    sp_, sm_ = mx, mn
    for (dst, base) in ((sp_, E), (sm_, E+16)):
        r.append(op(f"v_add_f32 v{dst}, v{base}, v{base+1}"))
        r.append(op(f"v_add_f32 v{t2}, v{base+2}, v{base+3}"))
        for k in range(4, 16, 2):
            r.append(op(f"v_add_f32 v{dst}, v{dst}, v{base+k}")); r.append(op(f"v_add_f32 v{t2}, v{t2}, v{base+k+1}"))
        r.append(op(f"v_add_f32 v{dst}, v{dst}, v{t2}"))
    r += xhalf(sp_, t1, "v_add_f32") + xhalf(sm_, t1, "v_add_f32")
    r += [op(f"v_rcp_f32 v{sp_}, v{sp_}"), op(f"v_rcp_f32 v{sm_}, v{sm_}"), op("s_nop 0")]
    for k in range(16):
        r.append(op(f"v_mul_f32 v{E+k}, v{E+k}, v{sp_}")); r.append(op(f"v_mul_f32 v{E+16+k}, v{E+16+k}, v{sm_}"))
    r += pack8(E, T) + pack8(E+16, T+8)
    return r

def body():
    p = []
    p += stamp("start") if False else []
    p += prologue()
    p += stamp("kernarg")
    p += nonce_write()
    for j in range(2): p += issue_x(j) + issue_fa(j)
    p += prologue2()
    p += r_loads()
    for j in range(2, 6): p += issue_x(j) + issue_fa(j)
    p += issue_x(6)
    p += lane_consts()
    p += stamp("issued")
    p += fa_phase()
    p += stamp("FA done")
    p += nonce_read()
    p += [op("s_barrier")]
    p += write_flag(FL_R, sR, sC)
    p += [op(f"s_mov_b32 m0, {WPHI}"), op(f"s_cmp_eq_u32 s{sW}, 0"), op(f"s_cselect_b32 s{sT3}, 0, {OOB}"),
          op(f"v_or_b32 v{vT2}, s{sT3}, v{vL16}"),
          vm(f"buffer_load_dwordx4 v{vT2}, {srd(SPHI)}, 0 offen lds", "wphi")]
    p = p[:-5]
    p += [op(f"s_and_b32 s{sT3}, s{sW}, 1"), op(f"s_lshl_b32 s{sT3}, s{sT3}, 10"),
          op(f"s_add_u32 m0, s{sT3}, {WPHI}"), op(f"v_add_u32 v{vT2}, s{sT3}, v{vL16}"),
          vm(f"buffer_load_dwordx4 v{vT2}, {srd(SPHI)}, 0 offen lds", "wphi")]
    p += fb_phase()
    p += stamp("FB done")
    T = TMP
    for (acc, S, sb, t) in ((ACC[0], SWS, sHA, 0), (ACC[1], SWS, sHA, 1), (ACC[2], SWSB, sHB, 0), (ACC[3], SWSB, sHB, 1)):
        p += [op("s_nop 7")] if acc == ACC[2] else []
        p += silu_tile(acc, T) + h_store(T, S, sb, t, "hst") + [op("s_nop 1")]
    p += stamp("silu done")
    p += poll_flags(flag_off(FL_R, sC))
    p += stamp("R polled")
    for j in range(7):
        p += dma(vL16, SWS, sWPc, 1*458752 + j*4096, sXw, j*4096 + 2048, "k", "sc1 ")
    for j in range(7):
        p += dma(vL16, SWS, sWPc, 2*458752 + j*4096, sXw, j*4096 + 3072, "v", "sc1 ")
    for j in range(7):
        p += dma(vL16, SWS, sWPc, 0*458752 + j*4096, sQw, j*4096, "q", "sc1 ")
    p += [Wait(vm="q"), op("s_barrier")]
    p += stamp("heads landed")
    p += write_flag(FL_H, sC, sR)
    WF = 248
    for s in range(2):
        for e in range(2):
            p.append(ds(f"ds_read_b64_tr_b16 {vr(WF+4*s+2*e,2)}, v{vWPH} offset:{(16*s+8*e)*56}", "wf"))
    p += head_tile('k', ACC[0])
    p += [Wait(ds="all"), op("s_nop 7"), op("s_nop 3")]
    PK = TMP
    p += feature_map(ACC[0], WF, PK)
    for sg in range(2):
        for g in range(4):
            p.append(ds(f"ds_write_b64 v{vPHW}, {vr(PK+8*sg+2*g,2)} offset:{64*sg+16*g}", "phw"))
    p += head_tile('v', ACC[1])
    p += [op("s_nop 7"), op("s_nop 3")]
    VP = TMP + 16
    p += pack8(ACC[1], VP)
    p += [op(f"v_mov_b32 v{vT0}, 0x3f803f80")]
    for k in range(8): p.append(op(f"v_cndmask_b32 v{VP+k}, v{VP+k}, v{vT0}, {sp(smD28)}"))
    p += [Wait(ds="all")]
    PH = TMP + 24
    for sg in range(2):
        for s in range(2):
            for e in range(2):
                p.append(ds(f"ds_read_b64_tr_b16 {vr(PH+8*sg+4*s+2*e,2)}, v{vPHR} offset:{(16*s+8*e)*PHI_P + 64*sg}", "phr"))
    p += [Wait(ds="all")]
    for sg in range(2):
        for s in range(2):
            c = '0' if s == 0 else vr(ACC[2+sg], 16)
            p.append(op(f"v_mfma_f32_32x32x16_bf16 {vr(ACC[2+sg],16)}, {vr(PH+8*sg+4*s,4)}, {vr(VP+4*s,4)}, {c}"))
    p += [op("s_nop 7"), op("s_nop 3")]
    p += [op(f"v_add_u32 v{vT0}, s{sXw}, v{vL16}")]
    for kap in range(4):
        for hf in range(2):
            p.append(ds(f"ds_write_b128 v{vT0}, {vr(ACC[2+(kap>>1)] + 8*(kap&1) + 4*hf, 4)} offset:{kap*4096 + hf*1024}", "redw"))
    p += [Wait(ds="all"), op("s_barrier")]
    p += [op(f"s_lshl_b32 s{sT}, s{sW}, 12"), op(f"v_add_u32 v{vT0}, s{sT}, v{vL16}"), op(f"v_add_u32 v{vT1}, {2*XW}, v{vT0}")]
    RD = TMP + 40
    for w2 in range(4):
        for hf in range(2):
            v, off = (vT0, w2*XW) if w2 < 2 else (vT1, (w2-2)*XW)
            p.append(ds(f"ds_read_b128 {vr(RD+8*w2+4*hf,4)}, v{v} offset:{off + hf*1024}", "redr"))
    p += [Wait(ds="all")]
    for k in range(8):
        p += [op(f"v_add_f32 v{RD+k}, v{RD+k}, v{RD+8+k}"), op(f"v_add_f32 v{RD+16+k}, v{RD+16+k}, v{RD+24+k}")]
    for k in range(8): p.append(op(f"v_add_f32 v{RD+k}, v{RD+k}, v{RD+16+k}"))
    for k in range(4): p.append(op(f"v_cvt_pk_bf16_f32 v{RD+8+k}, v{RD+2*k}, v{RD+2*k+1}"))
    p += [op(f"s_lshl_b32 s{sT}, s{sR}, 12"), op(f"s_add_u32 s{sT}, s{sT}, s{sKVc}"),
          vm(f"buffer_store_dwordx4 {vr(RD+8,4)}, v{vL16}, {srd(SWS)}, s{sT} offen sc1", "kvst")]
    p += stamp("kv stored")
    p += head_tile('q', ACC[0])
    p += [op("s_nop 7"), op("s_nop 3")]
    p += [op(f"v_mov_b32 v{vG}, v{ACC[0]+12}"), op(f"v_mov_b32 v{vT0}, v{ACC[0]+12}"), op("s_nop 1"),
          op(f"v_permlane32_swap_b32 v{vT0}, v{vG}"), op("s_nop 0"),
          op(f"v_mul_f32 v{vG}, 0xbfb8aa3b, v{vG}"), op(f"v_exp_f32 v{vG}, v{vG}"), op("s_nop 0"),
          op(f"v_add_f32 v{vG}, 1.0, v{vG}"), op(f"v_rcp_f32 v{vG}, v{vG}"), op("s_nop 0")]
    p += [op(f"v_and_b32 v{vT0}, 31, v0"), op(f"v_lshlrev_b32 v{vT0}, 2, v{vT0}"), op(f"s_lshl_b32 s{sT}, s{sW}, 7"),
          op(f"s_add_u32 s{sT}, s{sT}, {GSH}"), op(f"v_add_u32 v{vT0}, s{sT}, v{vT0}"),
          ds(f"ds_write_b32 v{vT0}, v{vG}", "gw")]
    PQ = 232
    p += feature_map(ACC[0], WF, TMP)
    for k in range(16): p.append(op(f"v_mov_b32 v{PQ+k}, v{TMP+k}"))
    p += [Wait(vm="kvst", ds="all"), op("s_barrier")]
    p += write_flag(FL_KV, sR, sC)
    p += stamp("phiq done")
    p += poll_flags(flag_off(FL_KV, sC))
    p += stamp("KV polled")
    KL = TMP
    for r2 in range(16):
        p += [op(f"s_add_u32 s{sT}, s{sKVc}, {r2*4096}"), vm(f"buffer_load_dwordx4 {vr(KL+4*r2,4)}, v{vL16}, {srd(SWS)}, s{sT} offen sc1", f"kvl{r2}")]
    AC = AF[0]
    p += [op(f"v_mov_b32 v{vT0}, 0x00003f80"), op(f"v_mov_b32 v{vT1}, 0x3f800000")]
    for k in range(8): p.append(op(f"v_mov_b32 v{AC+k}, 0"))
    for r2 in range(16):
        p += [Wait(vm=f"kvl{r2}")]
        for k in range(4):
            p += [op(f"v_dot2_f32_bf16 v{AC+2*k}, v{KL+4*r2+k}, v{vT0}, v{AC+2*k}"),
                  op(f"v_dot2_f32_bf16 v{AC+2*k+1}, v{KL+4*r2+k}, v{vT1}, v{AC+2*k+1}")]
    p += [op("s_nop 2")]
    for k in range(4): p.append(op(f"v_cvt_pk_bf16_f32 v{AC+8+k}, v{AC+2*k}, v{AC+2*k+1}"))
    p += [op(f"s_lshl_b32 s{sT}, s{sW}, 10"), op(f"s_add_u32 s{sT}, s{sT}, {KVS}"), op(f"v_add_u32 v{vT0}, s{sT}, v{vL16}"),
          ds(f"ds_write_b128 v{vT0}, {vr(AC+8,4)}", "kvsw"), Wait(ds="all"), op("s_barrier"),
          op(f"v_add_u32 v{vT0}, {KVS}, v{vL16}")]
    KF = TMP + 16
    for kap in range(4): p.append(ds(f"ds_read_b128 {vr(KF+4*kap,4)}, v{vT0} offset:{kap*1024}", "kvsr"))
    p += [Wait(ds="all")]
    for kap in range(4):
        c = '0' if kap == 0 else vr(ACC[0], 16)
        p.append(op(f"v_mfma_f32_32x32x16_bf16 {vr(ACC[0],16)}, {vr(KF+4*kap,4)}, {vr(PQ+4*kap,4)}, {c}"))
    p += [op("s_nop 7"), op("s_nop 3")]
    z = ACC[0]
    den, sc2 = vT0, vT1
    p += [op(f"v_mov_b32 v{den}, v{z+12}"), op(f"v_mov_b32 v{vT2}, v{z+12}"), op("s_nop 1"),
          op(f"v_permlane32_swap_b32 v{vT2}, v{den}"), op("s_nop 0"),
          op(f"v_add_f32 v{den}, 0x358637bd, v{den}"), op(f"v_rcp_f32 v{den}, v{den}"), op("s_nop 0"),
          op(f"v_mul_f32 v{den}, v{den}, v{vG}"), op(f"v_mov_b32 v{vT2}, 0"),
          op(f"v_cndmask_b32 v{sc2}, v{den}, v{vT2}, {sp(smH)}")]
    for k in range(16): p.append(op(f"v_mul_f32 v{z+k}, v{z+k}, v{den if k < 12 else sc2}"))
    p += pack8(z, TMP)
    p += [op(f"s_lshl_b32 s{sT}, s{sC}, 11"), op(f"s_add_u32 s{sT}, s{sT}, s{sHst}"), op(f"s_add_u32 s{sT}, s{sT}, {112*1024}")]
    for s in range(2):
        p.append(vm(f"buffer_store_dwordx4 {vr(TMP+4*s,4)}, v{vL16}, {srd(SWS)}, s{sT} offen offset:{s*1024} sc1", "ost"))
    p += [Wait(vm="ost"), op("s_barrier")]
    p += write_flag(FL_O, sC, sR)
    p += stamp("O stored")
    p += phase2()
    return p

def phase2():
    p = []
    sH0, sH1, sW2b, sWOb, sHa0, sHa1 = sXw+0, sW1w, sW0w, sWPc, sQw, sHA
    sH0, sH1, sW2b, sWOb, sHa0, sHa1 = sW1w, sW0w, sWPc, sQw, sHA, sHB
    gF = [230, 231]
    p += [op(f"s_lshr_b32 s{sT}, s{sC}, 3"), op(f"s_lshl_b32 s{sT}, s{sT}, 8"), op(f"s_add_u32 s{sT}, s{sT}, {GSH}"),
          op(f"v_and_b32 v{vT0}, 31, v0"), op(f"v_lshlrev_b32 v{vT0}, 2, v{vT0}"), op(f"v_add_u32 v{vT0}, s{sT}, v{vT0}"),
          ds(f"ds_read_b32 v{gF[0]}, v{vT0}", "gr"), ds(f"ds_read_b32 v{gF[1]}, v{vT0} offset:128", "gr"), Wait(ds="all"),
          op(f"v_sub_f32 v{gF[0]}, 1.0, v{gF[0]}"), op(f"v_sub_f32 v{gF[1]}, 1.0, v{gF[1]}")]
    p += [op(f"s_mul_i32 s{sH0}, s{sRT0}, {144*1024}"), op(f"s_add_u32 s{sH0}, s{sH0}, {H_OFF}"),
          op(f"s_lshl_b32 s{sT}, s{sW}, 13"), op(f"s_add_u32 s{sHa0}, s{sH0}, s{sT}"), op(f"s_add_u32 s{sHa0}, s{sHa0}, {112*1024}"),
          op(f"s_add_u32 s{sHa1}, s{sHa0}, {144*1024}"),
          op(f"s_mul_i32 s{sT}, s{sW}, {28*1024}"), op(f"s_add_u32 s{sH0}, s{sH0}, s{sT}"), op(f"s_add_u32 s{sH1}, s{sH0}, {144*1024}"),
          op(f"s_mul_i32 s{sW2b}, s{sW}, {448*896}"), op(f"s_mul_i32 s{sWOb}, s{sW}, {112*896}")]
    p += poll_flags(flag_off(FL_H, sR))
    p += stamp("H polled")
    D = 12
    NS = 14
    def issue(i):
        r = []
        slot = i % NS
        if i < 28:
            for e in range(2): r += dma(vW2, SW2, sW2b, (16*i + 8*e)*896, sXw, slot*2048 + e*1024, f"w{i}")
            for rt, sb in ((0, sH0), (1, sH1)):
                r += [op(f"s_add_u32 s{sT}, s{sb}, {i*1024}"),
                      vm(f"buffer_load_dwordx4 {ar(8*slot+4*rt,4)}, v{vL16}, {srd(SWSR)}, s{sT} offen sc1", f"w{i}")]
        else:
            a = i - 28
            rows = 28*(a >> 1) + 16*(a & 1)
            for e in range(2): r += dma(vW2, SWO, sWOb, (rows + 8*e)*896, sXw, slot*2048 + e*1024, f"w{i}")
            for rt, sb in ((0, sHa0), (1, sHa1)):
                r += [op(f"s_add_u32 s{sT}, s{sb}, {a*1024}"),
                      vm(f"buffer_load_dwordx4 {ar(8*slot+4*rt,4)}, v{vL16}, {srd(SWSR)}, s{sT} offen sc1", f"w{i}")]
        return r
    def reads(i):
        slot = i % NS; b = AF[0] + 8*(i % 4)
        return [ds(f"ds_read_b64_tr_b16 {vr(b+4*t+2*e,2)}, v{vP2[t]} offset:{slot*2048 + e*1024}", f"r{i}") for t in range(2) for e in range(2)]
    def mf(i):
        slot = i % NS; b = AF[0] + 8*(i % 4)
        r = []
        for t in range(2):
            for rt in range(2):
                acc = ACC[2*rt + t]
                c = '0' if i == 0 else vr(acc, 16)
                r.append(op(f"v_mfma_f32_32x32x16_bf16 {vr(acc,16)}, {vr(b+4*t,4)}, {ar(8*slot+4*rt,4)}, {c}"))
        return r
    for i in range(D): p += issue(i)
    p += [Wait(vm="w0")] + reads(0)
    for i in range(36):
        nxt = i + D
        if i + 1 < 36:
            if i + 1 == 28 - 0 and False: pass
            p += [Wait(vm=f"w{i+1}")] + reads(i+1)
        p += [Wait(ds=f"r{i}")] + mf(i)
        if i == 27:
            p += [op("s_nop 7"), op("s_nop 7")]
            for rt in range(2):
                for t in range(2):
                    for k in range(16): p.append(op(f"v_mul_f32 v{ACC[2*rt+t]+k}, v{ACC[2*rt+t]+k}, v{gF[rt]}"))
            p += [op("s_nop 1")]
        if nxt < 36:
            if nxt == 28:
                p += poll_flags(flag_off(FL_O, sR))
            p += issue(nxt)
    p += stamp("gemm2 done")
    p += [op("s_nop 7"), op("s_nop 7"), op("s_barrier")]
    p += [op(f"s_lshl_b32 s{sT}, s{sW}, 14"), op(f"v_add_u32 v{vT0}, s{sT}, v{vL16}")]
    for tl in range(4):
        for qd in range(4):
            p.append(ds(f"ds_write_b128 v{vT0}, {vr(ACC[tl]+4*qd,4)} offset:{tl*4096 + qd*1024}", "f"))
    p += [Wait(ds="all"), op("s_barrier")]
    p += [op(f"s_lshl_b32 s{sT}, s{sW}, 12"), op(f"v_add_u32 v{vT0}, s{sT}, v{vL16}")]
    RD = TMP
    for sw in range(4):
        for qd in range(4):
            p.append(ds(f"ds_read_b128 {vr(RD+16*sw+4*qd,4)}, v{vT0} offset:{sw*16384 + qd*1024}", "f2"))
    p += [Wait(ds="all")]
    for k in range(16):
        p += [op(f"v_add_f32 v{RD+k}, v{RD+k}, v{RD+16+k}"), op(f"v_add_f32 v{RD+32+k}, v{RD+32+k}, v{RD+48+k}")]
    for k in range(16): p.append(op(f"v_add_f32 v{RD+k}, v{RD+k}, v{RD+32+k}"))
    PKD = RD + 64
    p += pack8(RD, PKD) + [op("s_nop 1")]
    for g in range(2):
        p += [op(f"v_permlane32_swap_b32 v{PKD+4*g}, v{PKD+4*g+2}"), op(f"v_permlane32_swap_b32 v{PKD+4*g+1}, v{PKD+4*g+3}")]
    p += [op(f"s_lshr_b32 s{sT}, s{sW}, 1"), op(f"s_add_u32 s{sT}, s{sT}, s{sRT0}"), op(f"s_mul_i32 s{sT}, s{sT}, {32*896}"),
          op(f"s_lshl_b32 s{sT2}, s{sU2}, 7"), op(f"s_add_u32 s{sT}, s{sT}, s{sT2}"),
          op(f"s_and_b32 s{sT2}, s{sW}, 1"), op(f"s_lshl_b32 s{sT2}, s{sT2}, 6"), op(f"s_add_u32 s{sT}, s{sT}, s{sT2}"),
          op(f"v_and_b32 v{vT0}, 31, v0"), op(f"v_mul_u32_u24 v{vT0}, 896, v{vT0}"), op(f"v_lshrrev_b32 v{vT1}, 5, v0"),
          op(f"v_lshl_add_u32 v{vT0}, v{vT1}, 4, v{vT0}")]
    for g in range(2):
        p.append(vm(f"buffer_store_dwordx4 {vr(PKD+4*g,4)}, v{vT0}, {srd(SOUT)}, s{sT} offen offset:{32*g}", "out"))
    p += stamp("end")
    if STAMPS:
        p += [op("s_waitcnt vmcnt(0)")]
        for k in range(15): p.append(op(f"v_mov_b32 v{TMP+k}, s{4+k}"))
        p.append(op(f"v_mov_b32 v{TMP+15}, s3"))
        p += [op(f"s_lshl_b32 s{sT}, s2, 2"), op(f"s_add_u32 s{sT}, s{sT}, s{sW}"), op(f"s_lshl_b32 s{sT}, s{sT}, 6"),
              op(f"s_add_u32 s{sT}, s{sT}, {STAMP_OFF}"), op(f"s_mov_b32 s{SWS+2}, {STAMP_OFF + 65536}"),
              op(f"v_mov_b32 v{vT0}, 0"), op("s_mov_b64 exec, 1")]
        for q in range(4):
            p.append(op(f"buffer_store_dwordx4 {vr(TMP+4*q,4)}, v{vT0}, {srd(SWS)}, s{sT} offen offset:{16*q}"))
        p += [op("s_mov_b64 exec, -1")]
    return p

def main():
    seq = flatten(body())
    seq += [Label("END"), op("s_endpgm")]
    seq = resolve(seq)
    errs = check_hazards(seq)
    for e in errs: print("HAZARD:", e, file=sys.stderr)
    hdr = open("gated_mix__linear_kernel_hedgehog__dense_activation_silu__prompt.s.ref").read().split("\n")
    head = []
    for line in hdr:
        if line.startswith("; @launch"):
            head.append(f"; @launch grid=(256,1,1) block=(256,1,1) lds={LDS_BYTES}")
        elif line.startswith(";"): head.append(line)
        else: break
    txt = "\n".join(head) + f"""
.amdgcn_target "amdgcn-amd-amdhsa--gfx950"
.text
.globl {KNAME}
.p2align 8
.type {KNAME},@function
{KNAME}:
""" + emit(seq) + f"""
.section .rodata,"a"
.p2align 6
.amdhsa_kernel {KNAME}
  .amdhsa_next_free_vgpr 512
  .amdhsa_next_free_sgpr 102
  .amdhsa_accum_offset 256
  .amdhsa_group_segment_fixed_size 0
  .amdhsa_kernarg_size 88
  .amdhsa_user_sgpr_count 2
  .amdhsa_user_sgpr_kernarg_segment_ptr 1
  .amdhsa_system_sgpr_workgroup_id_x 1
.end_amdhsa_kernel
"""
    open(OUT, "w").write(txt)
    n = sum(1 for x in seq if isinstance(x, Ins))
    print(f"wrote {OUT}: {n} instructions, {len(errs)} hazards", file=sys.stderr)
main()
```
